```python
import torch

def _softmax(x, axis=-1):
    return torch.softmax(x, dim=axis)
def _gelu(x):
    return torch.nn.functional.gelu(x, approximate="tanh")
def _silu(x):
    return torch.nn.functional.silu(x)
def _sigmoid(x):
    return torch.sigmoid(x)
def _layernorm(x, axis=-1, eps=1e-5):
    m = x.mean(dim=axis, keepdim=True)
    v = x.var(dim=axis, keepdim=True, unbiased=False)
    return (x - m) / torch.sqrt(v + eps)
def _scatter_add(tgt, idx, src, axis=0):
    return tgt.clone().index_add_(axis, idx, src)
def _segment_sum(src, seg, n):
    out = torch.zeros((n,) + src.shape[1:], dtype=src.dtype)
    return out.index_add_(0, seg, src)
def _pad(x, pw):
    flat = tuple(v for pair in reversed(pw) for v in pair)
    return torch.nn.functional.pad(x, flat)

kernel_name = 'standalone__gqa_block_cached__near_ridge'

def setup_inputs():

    _w = (lambda a: (lambda t: t.to(torch.bfloat16) if t.is_floating_point() else t)(torch.as_tensor(a)))
    B, Sq, D = 8, 144, 448
    Hq, Hkv, Sk, Dh = 16, 8, 1024, 256
    assert Hq % Hkv == 0, (Hq, Hkv)
    return {
        "x": _w((lambda *s: torch.randn(*s, dtype=torch.bfloat16) * 0.8)(B, Sq, D)),
        "k_cache": _w((lambda *s: torch.randn(*s, dtype=torch.bfloat16) * 0.8)(B, Hkv, Sk, Dh)),
        "v_cache": _w((lambda *s: torch.randn(*s, dtype=torch.bfloat16) * 0.05)(B, Hkv, Sk, Dh)),
        "wq": _w((lambda *s: torch.randn(*s, dtype=torch.bfloat16) * 0.8)(D, Hq * Dh) * (D ** -0.5)),
        "wo": _w((lambda *s: torch.randn(*s, dtype=torch.bfloat16) * 0.05)(Hq * Dh, D) * ((Hq * Dh) ** -0.5)),
    }

def reference(x, k_cache, v_cache, wq, wo):
    B, Sq, D = x.shape
    Hq, Dh = 16, 256
    Hkv = k_cache.shape[1]
    rep = Hq // Hkv
    q = (lambda x, *d: x.permute(*d))((x @ wq).reshape(B, Sq, Hq, Dh), 0, 2, 1, 3)
    k = (lambda x, n, axis: torch.repeat_interleave(x, n, dim=axis))(k_cache, rep, axis=1)
    v = (lambda x, n, axis: torch.repeat_interleave(x, n, dim=axis))(v_cache, rep, axis=1)
    scores = torch.einsum("bhqd,bhkd->bhqk", q, k) * (Dh ** -0.5)
    p = _softmax(scores, axis=-1)
    o = torch.einsum("bhqk,bhkd->bhqd", p, v)
    return (lambda x, *d: x.permute(*d))(o, 0, 2, 1, 3).reshape(B, Sq, Hq * Dh) @ wo
```

```python
import re

def R(prefix, a, n=1):
    if n == 1: return f"{prefix}{a}"
    return f"{prefix}[{a}:{a+n-1}]"

def regs(prefix, a, n=1):
    return {(prefix, a + k) for k in range(n)}

class Tok:
    __slots__ = ("cls", "seq")
    def __init__(self): self.cls = None; self.seq = None

class Op:
    __slots__ = ("text", "kind", "rd", "wr", "needs", "tok", "after", "before", "mfma_c", "chain", "cost", "note")
    def __init__(self, text, kind, rd=(), wr=(), needs=(), tok=None, after=None, before=None, mfma_c=None, cost=1):
        self.text = text; self.kind = kind
        self.rd = set(rd); self.wr = set(wr)
        self.needs = list(needs); self.tok = tok
        self.after = after; self.before = before
        self.mfma_c = mfma_c
        self.cost = cost

class Emitter:
    def __init__(self):
        self.lines = []
        self.vm_issued = 0; self.vm_done = 0
        self.lg_issued = 0; self.lg_done = 0
        self.slot = 0
        self.hist = []
        self.ninstr = 0
        self.stats = {}
    def raw(self, text):
        self.lines.append(text)
    def comment(self, t):
        self.lines.append("    ; " + t)
    def label(self, name):
        self.lines.append(name + ":")
    def _put(self, text, kind):
        self.lines.append("    " + text)
        self.slot += 1; self.ninstr += 1
        self.stats[kind] = self.stats.get(kind, 0) + 1
    def nop(self, n):
        while n > 0:
            k = min(n, 16)
            self.lines.append(f"    s_nop {k-1}")
            self.slot += k; self.ninstr += 1
            self.stats['nop'] = self.stats.get('nop', 0) + 1
            n -= k
    def wait(self, vm=None, lg=None):
        parts = []
        if vm is not None: parts.append(f"vmcnt({min(vm,63)})")
        if lg is not None: parts.append(f"lgkmcnt({min(lg,15)})")
        if parts: self._put("s_waitcnt " + " ".join(parts), 'wait')
    def wait_tokens(self, toks):
        vm = None; lg = None
        for t in toks:
            assert t.seq is not None, "token not issued"
            if t.cls == 'vm':
                if t.seq >= self.vm_done:
                    n = self.vm_issued - 1 - t.seq
                    n = min(n, 63)
                    vm = n if vm is None else min(vm, n)
            else:
                if t.seq >= self.lg_done:
                    n = self.lg_issued - 1 - t.seq
                    n = min(n, 15)
                    lg = n if lg is None else min(lg, n)
        if vm is not None: self.vm_done = max(self.vm_done, self.vm_issued - vm)
        if lg is not None: self.lg_done = max(self.lg_done, self.lg_issued - lg)
        self.wait(vm, lg)
    def wait_all(self, vm=True, lg=True):
        v = None; l = None
        if vm: v = 0; self.vm_done = self.vm_issued
        if lg: l = 0; self.lg_done = self.lg_issued
        self.wait(v, l)
    def _hazard(self, op):
        need = 0
        touched = op.rd | op.wr
        for (sl, p) in reversed(self.hist):
            dist = self.slot - sl - 1
            if dist > 20: break
            req = 0
            if p.kind == 'mfma':
                if op.kind == 'mfma':
                    ab = op.rd - (op.mfma_c or set())
                    if ab & p.wr: req = max(req, 8)
                    if (op.mfma_c or set()) & p.wr:
                        if op.mfma_c != p.wr: req = max(req, 6)
                    elif op.wr & p.wr: req = max(req, 6)
                else:
                    if touched & p.wr: req = max(req, 8)
                    if op.kind in ('valu', 'trans') and p.mfma_c and (op.wr & p.mfma_c): req = max(req, 3)
            elif p.kind in ('valu', 'trans'):
                if op.kind == 'mfma' and (op.rd & p.wr): req = max(req, 2)
                if p.kind == 'trans' and op.kind in ('valu', 'lds', 'vmem', 'mfma') and (op.rd & p.wr): req = max(req, 1)
                if op.text.startswith('v_permlane') and (touched & p.wr): req = max(req, 2)
                if op.text.startswith(('v_readfirstlane', 'v_readlane')) and (op.rd & p.wr): req = max(req, 1)
                sw = {r for r in p.wr if r[0] == 's'}
                if sw & op.rd:
                    if op.kind == 'vmem': req = max(req, 5)
                    elif op.kind in ('valu', 'trans'): req = max(req, 2)
                    else: req = max(req, 1)
            elif p.kind == 'vmem' and p.text.startswith('buffer_store_dwordx4'):
                if op.wr & p.rd: req = max(req, 2)
            elif p.kind == 'salu':
                if ('m0', 0) in p.wr and op.kind == 'vmem' and ' lds' in op.text: req = max(req, 1)
            if req > dist: need = max(need, req - dist)
        if need: self.nop(need)
    def emit(self, op):
        if op.needs: self.wait_tokens(op.needs)
        self._hazard(op)
        self.hist.append((self.slot, op))
        if len(self.hist) > 40: self.hist = self.hist[-30:]
        self._put(op.text, op.kind)
        if op.kind == 'vmem':
            if op.tok is not None: op.tok.cls = 'vm'; op.tok.seq = self.vm_issued
            self.vm_issued += 1
        elif op.kind == 'lds':
            if op.tok is not None: op.tok.cls = 'lg'; op.tok.seq = self.lg_issued
            self.lg_issued += 1
    def s(self, text, rd=(), wr=()):
        self.emit(Op(text, 'salu', rd, wr))
    def v(self, text, rd=(), wr=(), kind='valu'):
        self.emit(Op(text, kind, rd, wr))

def schedule(em, backbone, chains, cap=2):
    pos = [0] * len(chains)
    n = len(backbone)
    for ch in chains:
        dl = None
        for op in reversed(ch):
            if op.before is not None: dl = op.before if dl is None else min(dl, op.before)
            op.before = dl
    def ready(ci, p):
        if pos[ci] >= len(chains[ci]): return None
        op = chains[ci][pos[ci]]
        if op.after is not None and op.after >= p: return None
        return op
    def fill(p, budget):
        while True:
            best = None; bi = None
            for ci in range(len(chains)):
                op = ready(ci, p)
                if op is None: continue
                key = (op.before if op.before is not None else 10**9, ci)
                if best is None or key < best: best = key; bi = ci
            if bi is None: return
            op = chains[bi][pos[bi]]
            forced = op.before is not None and op.before <= p
            if budget <= 0 and not forced: return
            em.emit(op); pos[bi] += 1; budget -= op.cost
    fill(0, 0)
    for p in range(n):
        em.emit(backbone[p])
        fill(p + 1, cap)
    while True:
        any_left = False
        for ci in range(len(chains)):
            while pos[ci] < len(chains[ci]):
                em.emit(chains[ci][pos[ci]]); pos[ci] += 1; any_left = True
        if not any_left: break
```

```python
import sys, struct, math
from emit import *

DBG = None
for a in sys.argv[1:]:
    if a.startswith("dbg="): DBG = a[4:]
OUT = "standalone__gqa_block_cached__near_ridge.s"
for a in sys.argv[1:]:
    if a.startswith("out="): OUT = a[4:]

RING_R   = 7
SLOT     = 4224
RING_W   = RING_R * SLOT
PB0      = 0
PBSZ     = 20480
STB      = PB0 + 2 * PBSZ
RING0    = STB + 2 * 1280
LDS_SIZE = RING0 + 4 * RING_W
assert LDS_SIZE <= 163840
PART_H   = 1152 * 896

SA, SB_, OA, PF = 16, 56, 96, 176
V_K, V_DMA, V_TR, V_PR, V_PW, V_MC, V_L, V_ROW, V_CHK = 232, 233, 237, 238, 242, 244, 249, 254, 255
QF, KF, VF = 0, 160, 224
S_X, S_WQ, S_KK, S_V, S_WO, S_PT = 4, 8, 12, 16, 20, 24
S_W, S_RING, S_C = 28, 29, 30
S_TMP = 32
S_TQ = 40
S_EXEC = 46
S_H, S_ROW0 = 50, 51

em = Emitter()
_tmpi = [0]
def stmp():
    r = S_TMP + _tmpi[0] % 8; _tmpi[0] += 1
    return r

def V(n): return ('v', n)
def A(n): return ('a', n)
def S(n): return ('s', n)

def valu(text, rd, wr, kind='valu', **kw): return Op(text, kind, rd, wr, **kw)

def mfma(dpre, d, apre, a, bpre, b, czero=False, needs=()):
    c = "0" if czero else R(dpre, d, 4)
    rd = regs(apre, a, 4) | regs(bpre, b, 4)
    cset = set() if czero else regs(dpre, d, 4)
    return Op(f"v_mfma_f32_16x16x32_bf16 {R(dpre,d,4)}, {R(apre,a,4)}, {R(bpre,b,4)}, {c}", 'mfma',
              rd | cset, regs(dpre, d, 4), needs=needs, mfma_c=cset)

NSLOT = 14 + 32 + 16
dma_tok = {}
def slot_info(s):
    if s < 14:  return ('wq', S_WQ, 32 * s * 8192)
    if s < 46:  return ('v',  S_V,  16384 * (s - 14))
    k = s - 46
    return ('wo', S_WO, 28672 * (k >> 1) + 128 * (k & 1))
STRIDE = {'wq': 8192, 'v': 512, 'wo': 896}

def dma_voff_ops(kind):
    st = STRIDE[kind]
    ops = []
    t = stmp()
    ops.append(Op(f"s_mov_b32 s{t}, {st}", 'salu', (), {S(t)}))
    ops.append(valu(f"v_mad_u32_u24 v{V_DMA}, v{V_ROW}, s{t}, v{V_CHK}", {V(V_ROW), V(V_CHK), S(t)}, {V(V_DMA)}))
    wavemul = {'wq': 128, 'v': 128, 'wo': 224}[kind]
    t2 = stmp()
    if kind == 'wq':
        ops.append(Op(f"s_lshl_b32 s{t2}, s{S_H}, 9", 'salu', {S(S_H)}, {S(t2)}))
        t3 = stmp()
        ops.append(Op(f"s_mul_i32 s{t3}, s{S_W}, {wavemul}", 'salu', {S(S_W)}, {S(t3)}))
        ops.append(Op(f"s_add_u32 s{t2}, s{t2}, s{t3}", 'salu', {S(t2), S(t3)}, {S(t2)}))
    else:
        ops.append(Op(f"s_mul_i32 s{t2}, s{S_W}, {wavemul}", 'salu', {S(S_W)}, {S(t2)}))
    ops.append(valu(f"v_add_u32 v{V_DMA}, s{t2}, v{V_DMA}", {S(t2), V(V_DMA)}, {V(V_DMA)}))
    for d in (1, 2, 3):
        c = (8 * (d >> 1) + 2 * (d & 1)) * st - 1056 * d + 64
        ops.append(valu(f"v_add_u32 v{V_DMA+d}, {c}, v{V_DMA}", {V(V_DMA)}, {V(V_DMA + d)}))
    ops.append(valu(f"v_add_u32 v{V_DMA}, 64, v{V_DMA}", {V(V_DMA)}, {V(V_DMA)}))
    return ops

def dma_ops(s, needs=(), after=None, before=None):
    if s >= NSLOT: return []
    kind, srd, moff = slot_info(s)
    ops = []
    if s == 14: ops += dma_voff_ops('v')
    if s == 46: ops += dma_voff_ops('wo')
    pos = s % RING_R
    t = stmp()
    ops.append(Op(f"s_add_u32 m0, s{S_RING}, {pos*SLOT}", 'salu', {S(S_RING)}, {('m0', 0)}))
    ops.append(Op(f"s_mov_b32 s{t}, {moff}", 'salu', (), {S(t)}))
    toks = []
    for d in range(4):
        tk = Tok(); toks.append(tk)
        off = f" offset:{1056*d}" if d else ""
        ops.append(Op(f"buffer_load_dwordx4 v{V_DMA+d}, s[{srd}:{srd+3}], s{t} offen{off} lds", 'vmem',
                      {V(V_DMA + d), S(t), ('m0', 0)}, (), needs=(needs if d == 0 else ()), tok=tk))
    dma_tok[s] = toks
    if after is not None: ops[0].after = after
    if before is not None: ops[-1].before = before
    return ops

def tr_ops(s, ntile, dst, after=None, before=None):
    pos = s % RING_R
    ops = []; toks = []
    for td in range(ntile):
        tt = []
        for hf in range(2):
            tk = Tok(); tt.append(tk)
            off = pos * SLOT + 256 * hf + 32 * td
            first = (td == 0 and hf == 0)
            ops.append(Op(f"ds_read_b64_tr_b16 {R('a', dst+4*td+2*hf, 2)}, v{V_TR} offset:{off}", 'lds',
                          {V(V_TR)}, regs('a', dst + 4 * td + 2 * hf, 2), needs=(dma_tok[s] if first else ()), tok=tk))
        toks.append(tt)
    if after is not None: ops[0].after = after
    if before is not None: ops[-1].before = before
    return ops, toks

def header():
    em.raw('.amdgcn_target "amdgcn-amd-amdhsa--gfx950"')
    em.raw(".text")

def kernel_begin(name):
    em.raw(f".globl {name}\n.p2align 8\n.type {name},@function\n{name}:")

def kernel_desc(name, vgpr, sgpr, accum):
    em.raw(f""".section .rodata,"a"
.p2align 6
.amdhsa_kernel {name}
  .amdhsa_next_free_vgpr {vgpr}
  .amdhsa_next_free_sgpr {sgpr}
  .amdhsa_accum_offset {accum}
  .amdhsa_group_segment_fixed_size 0
  .amdhsa_kernarg_size 64
  .amdhsa_user_sgpr_count 2
  .amdhsa_user_sgpr_kernarg_segment_ptr 1
  .amdhsa_system_sgpr_workgroup_id_x 1
.end_amdhsa_kernel
.text""")

def srd_from(dst, lo, hi, size, addlo=None, bias=0):
    if addlo is not None:
        em.s(f"s_add_u32 s{dst}, s{lo}, s{addlo}", {S(lo), S(addlo)}, {S(dst)})
        em.s(f"s_addc_u32 s{dst+1}, s{hi}, 0", {S(hi)}, {S(dst + 1)})
    else:
        em.s(f"s_mov_b32 s{dst}, s{lo}", {S(lo)}, {S(dst)})
        em.s(f"s_mov_b32 s{dst+1}, s{hi}", {S(hi)}, {S(dst + 1)})
    if bias:
        em.s(f"s_sub_u32 s{dst}, s{dst}, {bias}", {S(dst)}, {S(dst)})
        em.s(f"s_subb_u32 s{dst+1}, s{dst+1}, 0", {S(dst + 1)}, {S(dst + 1)})
    em.s(f"s_mov_b32 s{dst+2}, {size+bias}", (), {S(dst + 2)})
    em.s(f"s_mov_b32 s{dst+3}, 0x00020000", (), {S(dst + 3)})

def dump_and_exit(kind):
    pass

def main_kernel():
    kernel_begin("gqa_main_kernel")
    em.s("s_cmp_ge_u32 s2, 256", {S(2)}, ())
    em.s("s_cbranch_scc1 L_main_done")
    em.s("s_load_dwordx4 s[52:55], s[0:1], 0")
    em.s("s_load_dwordx4 s[56:59], s[0:1], 16")
    em.s("s_load_dwordx2 s[60:61], s[0:1], 32")
    em.s("s_load_dwordx2 s[62:63], s[0:1], 56")
    em.v("v_lshrrev_b32 v1, 6, v0", {V(0)}, {V(1)})
    em.v("v_and_b32 v2, 63, v0", {V(0)}, {V(2)})
    em.v("v_readfirstlane_b32 s28, v1", {V(1)}, {S(S_W)})
    em.v("v_and_b32 v3, 15, v2", {V(2)}, {V(3)})
    em.v("v_lshrrev_b32 v4, 4, v2", {V(2)}, {V(4)})
    em.s("s_and_b32 s64, s2, 7", {S(2)}, {S(64)})
    em.s("s_lshr_b32 s65, s2, 3", {S(2)}, {S(65)})
    em.s("s_lshr_b32 s66, s65, 2", {S(65)}, {S(66)})
    em.s("s_and_b32 s67, s65, 3", {S(65)}, {S(67)})
    em.s("s_lshr_b32 s68, s67, 1", {S(67)}, {S(68)})
    em.s("s_lshl_b32 s69, s64, 1", {S(64)}, {S(69)})
    em.s(f"s_add_u32 s{S_H}, s69, s68", {S(69), S(68)}, {S(S_H)})
    em.s("s_and_b32 s68, s67, 1", {S(67)}, {S(68)})
    em.s("s_mul_i32 s69, s66, 144", {S(66)}, {S(69)})
    em.s("s_mul_i32 s70, s68, 72", {S(68)}, {S(70)})
    em.s(f"s_add_u32 s{S_ROW0}, s69, s70", {S(69), S(70)}, {S(S_ROW0)})
    em.s("s_lshl_b32 s71, s66, 3", {S(66)}, {S(71)})
    em.s("s_add_u32 s71, s71, s64", {S(71), S(64)}, {S(71)})
    em.s("s_lshl_b32 s71, s71, 19", {S(71)}, {S(71)})
    em.s(f"s_mul_i32 s72, s{S_H}, {256*896}", {S(S_H)}, {S(72)})
    em.s(f"s_mul_i32 s73, s{S_H}, {PART_H}", {S(S_H)}, {S(73)})
    em.s(f"s_mul_i32 s{S_RING}, s{S_W}, {RING_W}", {S(S_W)}, {S(S_RING)})
    em.s(f"s_add_u32 s{S_RING}, s{S_RING}, {RING0}", {S(S_RING)}, {S(S_RING)})
    c = math.log2(math.e) / 16.0
    em.s(f"s_mov_b32 s{S_C}, 0x{struct.unpack('<I', struct.pack('<f', c))[0]:08x}", (), {S(S_C)})
    for tq in range(1, 5): em.s(f"s_mov_b32 s{S_TQ+tq}, {tq*14336}", (), {S(S_TQ + tq)})
    em.s(f"s_mov_b32 s{S_EXEC}, 0x00ff00ff", (), {S(S_EXEC)})
    em.s(f"s_mov_b32 s{S_EXEC+1}, 0x00ff00ff", (), {S(S_EXEC + 1)})
    em.v("v_lshrrev_b32 v5, 1, v4", {V(4)}, {V(5)})
    em.v("v_lshlrev_b32 v5, 4, v5", {V(5)}, {V(5)})
    em.v("v_and_b32 v6, 1, v4", {V(4)}, {V(6)})
    em.v("v_lshl_add_u32 v5, v6, 2, v5", {V(6), V(5)}, {V(5)})
    em.v("v_bfe_u32 v6, v2, 3, 1", {V(2)}, {V(6)})
    em.v(f"v_add_u32 v{V_ROW}, v5, v6", {V(5), V(6)}, {V(V_ROW)})
    em.v("v_and_b32 v6, 7, v2", {V(2)}, {V(6)})
    em.v(f"v_lshlrev_b32 v{V_CHK}, 4, v6", {V(6)}, {V(V_CHK)})
    em.v("v_and_b32 v5, 1, v4", {V(4)}, {V(5)})
    em.v("v_lshlrev_b32 v5, 1, v5", {V(5)}, {V(5)})
    em.v("v_lshrrev_b32 v6, 3, v3", {V(3)}, {V(6)})
    em.v("v_add_u32 v5, v5, v6", {V(5), V(6)}, {V(5)})
    em.v("v_mul_u32_u24 v5, 1056, v5", {V(5)}, {V(5)})
    em.v("v_lshrrev_b32 v6, 1, v4", {V(4)}, {V(6)})
    em.v("v_lshl_add_u32 v5, v6, 9, v5", {V(6), V(5)}, {V(5)})
    em.v("v_bfe_u32 v6, v3, 2, 1", {V(3)}, {V(6)})
    em.v("v_lshl_add_u32 v5, v6, 7, v5", {V(6), V(5)}, {V(5)})
    em.v("v_and_b32 v6, 3, v3", {V(3)}, {V(6)})
    em.v("v_lshl_add_u32 v5, v6, 3, v5", {V(6), V(5)}, {V(5)})
    em.v(f"v_add_u32 v{V_TR}, s{S_RING}, v5", {S(S_RING), V(5)}, {V(V_TR)})
    em.v("v_lshlrev_b32 v5, 8, v3", {V(3)}, {V(5)})
    for ks in range(4):
        em.v(f"v_add_u32 v6, {4*ks}, v4", {V(4)}, {V(6)})
        em.v("v_xor_b32 v6, v6, v3", {V(6), V(3)}, {V(6)})
        em.v(f"v_lshl_add_u32 v{V_PR+ks}, v6, 4, v5", {V(6), V(5)}, {V(V_PR + ks)})
    em.s("s_lshl_b32 s74, s28, 2", {S(S_W)}, {S(74)})
    em.v("v_lshrrev_b32 v7, 1, v4", {V(4)}, {V(7)})
    em.v("v_add_u32 v7, s74, v7", {S(74), V(7)}, {V(7)})
    em.v("v_and_b32 v8, 1, v4", {V(4)}, {V(8)})
    em.v("v_lshl_add_u32 v8, v8, 3, v5", {V(8), V(5)}, {V(8)})
    for kt in range(2):
        em.v(f"v_add_u32 v6, {2*kt}, v7", {V(7)}, {V(6)})
        em.v("v_xor_b32 v6, v6, v3", {V(6), V(3)}, {V(6)})
        em.v(f"v_lshl_add_u32 v{V_PW+kt}, v6, 4, v8", {V(6), V(8)}, {V(V_PW + kt)})
    em.s("s_lshl_b32 s74, s28, 5", {S(S_W)}, {S(74)})
    em.v("v_add_u32 v6, s74, v3", {S(74), V(3)}, {V(6)})
    em.v("v_lshlrev_b32 v6, 9, v6", {V(6)}, {V(6)})
    em.v(f"v_lshl_add_u32 v{V_K}, v4, 4, v6", {V(4), V(6)}, {V(V_K)})
    em.v(f"v_add_u32 v6, s{S_ROW0}, v3", {S(S_ROW0), V(3)}, {V(6)})
    em.v("v_mul_u32_u24 v6, 896, v6", {V(6)}, {V(6)})
    em.v("v_lshl_add_u32 v9, v4, 4, v6", {V(4), V(6)}, {V(9)})
    em.s("s_waitcnt lgkmcnt(0)")
    srd_from(S_X, 52, 53, 1152 * 896)
    srd_from(S_KK, 54, 55, 524288, addlo=71)
    srd_from(S_V, 56, 57, 524288, addlo=71, bias=64)
    srd_from(S_WQ, 58, 59, 448 * 8192, bias=64)
    srd_from(S_WO, 60, 61, 256 * 896, addlo=72, bias=64)
    srd_from(S_PT, 62, 63, PART_H, addlo=73)
    for op in dma_voff_ops('wq'): em.emit(op)

    def xf(kk, tq):
        f = kk * 5 + tq
        if f < 20: return ('v', OA + 4 * f)
        if f < 60: return ('a', 4 * (f - 20))
        return ('v', PF + 4 * (f - 60))
    xtok = {}
    def xload(kk, tq):
        p, r = xf(kk, tq); tk = Tok(); xtok[(kk, tq)] = tk
        so = "0" if tq == 0 else f"s{S_TQ+tq}"
        return Op(f"buffer_load_dwordx4 {R(p,r,4)}, v9, s[{S_X}:{S_X+3}], {so} offen offset:{64*kk}", 'vmem',
                  {V(9)}, regs(p, r, 4), tok=tk)
    ktok = {}
    def kload_ops(blk, pre, base):
        t0 = stmp(); t1 = stmp()
        setup = [Op(f"s_mov_b32 s{t0}, {65536*blk}", 'salu', (), {S(t0)}),
                 Op(f"s_mov_b32 s{t1}, {65536*blk+8192}", 'salu', (), {S(t1)})]
        return setup, (t0, t1)
    def kload(blk, kt, kk, pre, base):
        tk = Tok(); ktok[(blk, kt, kk)] = tk
        r = base + 4 * (kk * 2 + kt)
        return Op(f"buffer_load_dwordx4 {R(pre,r,4)}, v{V_K}, s[{S_KK}:{S_KK+3}], s{76+kt} offen offset:{64*kk}", 'vmem',
                  {V(V_K), S(76 + kt)}, regs(pre, r, 4), tok=tk)
    def kbase(blk):
        return [Op(f"s_mov_b32 s76, {65536*blk}", 'salu', (), {S(76)}),
                Op(f"s_mov_b32 s77, {65536*blk+8192}", 'salu', (), {S(77)})]

    for kk in range(14):
        if kk < RING_R:
            for op in dma_ops(kk): em.emit(op)
        for tq in range(5): em.emit(xload(kk, tq))
    for op in kbase(0): em.emit(op)
    for kk in range(8):
        for kt in range(2): em.emit(kload(0, kt, kk, 'a', KF))

    back = []; chains = []
    trtok = {}
    ops, trtok[0] = tr_ops(0, 4, VF)
    for op in ops: em.emit(op)
    for kk in range(14):
        vf = VF + 16 * (kk & 1)
        for td in range(4):
            for tq in range(5):
                p, r = xf(kk, tq)
                nd = list(trtok[kk][td]) if tq == 0 else []
                if td == 0: nd.append(xtok[(kk, tq)])
                back.append(mfma('v', SA + 4 * (td * 5 + tq), 'a', vf + 4 * td, p, r, czero=(kk == 0), needs=nd))
        ch = []
        ch += dma_ops(kk + RING_R, needs=[t for tt in trtok[kk] for t in tt], after=20 * kk + 15)
        chains.append(ch)
        if kk + 1 < 14:
            ops, trtok[kk + 1] = tr_ops(kk + 1, 4, VF + 16 * ((kk + 1) & 1), after=20 * kk, before=20 * kk + 14)
            chains.append(ops)
    ch = kbase(1); ch[0].after = 80
    for kk in range(8):
        for kt in range(2): ch.append(kload(1, kt, kk, 'v', OA))
    chains.append(ch)
    schedule(em, back, chains)

    def staging(src_base, scale=None):
        em.v("v_lshlrev_b32 v5, 9, v3", {V(3)}, {V(5)})
        em.v("v_and_b32 v6, 1, v4", {V(4)}, {V(6)})
        em.v("v_lshl_add_u32 v6, v6, 3, v5", {V(6), V(5)}, {V(6)})
        em.s("s_lshl_b32 s74, s28, 3", {S(S_W)}, {S(74)})
        em.v("v_lshrrev_b32 v7, 1, v4", {V(4)}, {V(7)})
        em.v("v_add_u32 v7, s74, v7", {S(74), V(7)}, {V(7)})
        for td in range(4):
            em.v(f"v_add_u32 v8, {2*td}, v7", {V(7)}, {V(8)})
            em.v("v_xor_b32 v8, v8, v3", {V(8), V(3)}, {V(8)})
            em.v(f"v_lshl_add_u32 v{10+td}, v8, 4, v6", {V(8), V(6)}, {V(10 + td)})
        n = 0
        for td in range(4):
            for tq in range(5):
                a = src_base + 4 * (td * 5 + tq)
                if scale is not None:
                    for r in range(4):
                        em.v(f"v_mul_f32 v{a+r}, v{a+r}, v{scale+tq}", {V(a + r), V(scale + tq)}, {V(a + r)})
                t = 216 + 2 * (n % 8); n += 1
                em.v(f"v_cvt_pk_bf16_f32 v{t}, v{a}, v{a+1}", {V(a), V(a + 1)}, {V(t)})
                em.v(f"v_cvt_pk_bf16_f32 v{t+1}, v{a+2}, v{a+3}", {V(a + 2), V(a + 3)}, {V(t + 1)})
                em.emit(Op(f"ds_write_b64 v{10+td}, v[{t}:{t+1}] offset:{PB0+8192*tq}", 'lds', {V(10 + td), V(t), V(t + 1)}, ()))
        for k in range(4):
            em.v(f"v_lshl_add_u32 v{216+k}, v3, 8, v{V_PR+k}", {V(3), V(V_PR + k)}, {V(216 + k)})
        em.wait_all(vm=False)
        em.s("s_barrier")
        toks = {}
        for kk in range(8):
            for tq in range(5):
                tk = Tok(); toks[(kk, tq)] = tk
                r = QF + 4 * (kk * 5 + tq)
                em.emit(Op(f"ds_read_b128 {R('a', r, 4)}, v{216+(kk&3)} offset:{PB0+8192*tq+256*(kk>>2)}", 'lds',
                           {V(216 + (kk & 3))}, regs('a', r, 4), tok=tk))
        return toks
    qtok = staging(SA)

    def s_backbone(blk, sbase, kpre, kb, first_use_q=False):
        ops = []
        for kk in range(8):
            for kt in range(2):
                for tq in range(5):
                    nd = []
                    if tq == 0: nd.append(ktok[(blk, kt, kk)])
                    if first_use_q and kt == 0: nd.append(qtok[(kk, tq)])
                    ops.append(mfma('v', sbase + 4 * (kt * 5 + tq), kpre, kb + 4 * (kk * 2 + kt), 'a', QF + 4 * (kk * 5 + tq),
                                    czero=(kk == 0), needs=nd))
        return ops
    tcnt = [0]
    def p_unit(sbase, tq, kt, pbuf):
        a = sbase + 4 * (kt * 5 + tq)
        ops = []
        for r in range(4):
            ops.append(valu(f"v_fma_f32 v{a+r}, v{a+r}, s{S_C}, -v{V_MC+tq}", {V(a + r), S(S_C), V(V_MC + tq)}, {V(a + r)}))
        for r in range(4):
            ops.append(valu(f"v_exp_f32 v{a+r}, v{a+r}", {V(a + r)}, {V(a + r)}, kind='trans', cost=2))
        t = 216 + 2 * (tcnt[0] % 8); tcnt[0] += 1
        ops.append(valu(f"v_cvt_pk_bf16_f32 v{t}, v{a}, v{a+1}", {V(a), V(a + 1)}, {V(t)}))
        ops.append(valu(f"v_add_f32 v{V_L+tq}, v{V_L+tq}, v{a}", {V(V_L + tq), V(a)}, {V(V_L + tq)}))
        ops.append(valu(f"v_cvt_pk_bf16_f32 v{t+1}, v{a+2}, v{a+3}", {V(a + 2), V(a + 3)}, {V(t + 1)}))
        ops.append(valu(f"v_add_f32 v{V_L+tq}, v{V_L+tq}, v{a+1}", {V(V_L + tq), V(a + 1)}, {V(V_L + tq)}))
        ops.append(Op(f"ds_write_b64 v{V_PW+kt}, v[{t}:{t+1}] offset:{pbuf+4096*tq}", 'lds', {V(V_PW + kt), V(t), V(t + 1)}, ()))
        ops.append(valu(f"v_add_f32 v{V_L+tq}, v{V_L+tq}, v{a+2}", {V(V_L + tq), V(a + 2)}, {V(V_L + tq)}))
        ops.append(valu(f"v_add_f32 v{V_L+tq}, v{V_L+tq}, v{a+3}", {V(V_L + tq), V(a + 3)}, {V(V_L + tq)}))
        return ops
    def xlane_reduce(vals, op):
        ops = []
        for swap in ("v_permlane32_swap_b32", "v_permlane16_swap_b32"):
            for n, r in enumerate(vals):
                ops.append(valu(f"v_mov_b32 v{10+n}, v{r}", {V(r)}, {V(10 + n)}))
            for n, r in enumerate(vals):
                ops.append(valu(f"{swap} v{10+n}, v{r}", {V(10 + n), V(r)}, {V(10 + n), V(r)}))
            for n, r in enumerate(vals):
                ops.append(valu(f"{op} v{r}, v{r}, v{10+n}", {V(10 + n), V(r)}, {V(r)}))
        return ops
    def stat_exchange(vals, op, stb):
        ops = xlane_reduce(vals, op)
        ops.append(Op("s_lshl_b32 s74, s28, 2", 'salu', {S(S_W)}, {S(74)}))
        ops.append(valu("v_lshlrev_b32 v15, 4, v3", {V(3)}, {V(15)}))
        ops.append(valu("v_add_u32 v9, s74, v15", {S(74), V(15)}, {V(9)}))
        last = None
        for tq in range(5):
            tk = Tok(); last = tk
            ops.append(Op(f"ds_write_b32 v9, v{vals[tq]} offset:{stb+256*tq}", 'lds', {V(9), V(vals[tq])}, (), tok=tk))
        ops.append(Op("s_barrier", 'salu', needs=[last]))
        toks = []
        for tq in range(5):
            tk = Tok(); toks.append(tk)
            d = PF + 4 * tq if False else None
            dd = 10 if tq == 4 else 216 + 4 * tq
            ops.append(Op(f"ds_read_b128 v[{dd}:{dd+3}], v15 offset:{stb+256*tq}", 'lds', {V(15)}, regs('v', dd, 4), tok=tk))
        for tq in range(5):
            dd = 10 if tq == 4 else 216 + 4 * tq
            if op == "v_max_f32":
                ops.append(valu(f"v_max3_f32 v{dd}, v{dd}, v{dd+1}, v{dd+2}", regs('v', dd, 3), {V(dd)}, needs=[toks[tq]]))
                ops.append(valu(f"v_max_f32 v{vals[tq]}, v{dd}, v{dd+3}", {V(dd), V(dd + 3)}, {V(vals[tq])}))
            else:
                ops.append(valu(f"v_add_f32 v{dd}, v{dd}, v{dd+1}", regs('v', dd, 2), {V(dd)}, needs=[toks[tq]]))
                ops.append(valu(f"v_add_f32 v{dd+2}, v{dd+2}, v{dd+3}", regs('v', dd + 2, 2), {V(dd + 2)}))
                ops.append(valu(f"v_add_f32 v{vals[tq]}, v{dd}, v{dd+2}", {V(dd), V(dd + 2)}, {V(vals[tq])}))
        return ops

    back = s_backbone(0, SA, 'a', KF, first_use_q=True)
    ch = kbase(2)
    for kk in range(8):
        for kt in range(2):
            op = kload(2, kt, kk, 'a', KF); op.after = kk * 10 + kt * 5 + 4; ch.append(op)
    ch[0].after = 4
    schedule(em, back, [ch])
    back = s_backbone(1, SB_, 'v', OA)
    ch = []
    for tq in range(5):
        a0 = SA + 4 * tq; a1 = SA + 4 * (5 + tq); m = V_MC + tq
        ch.append(valu(f"v_max3_f32 v{m}, v{a0}, v{a0+1}, v{a0+2}", regs('v', a0, 3), {V(m)}))
        ch.append(valu(f"v_max3_f32 v{m}, v{m}, v{a0+3}, v{a1}", {V(m), V(a0 + 3), V(a1)}, {V(m)}))
        ch.append(valu(f"v_max3_f32 v{m}, v{m}, v{a1+1}, v{a1+2}", {V(m), V(a1 + 1), V(a1 + 2)}, {V(m)}))
        ch.append(valu(f"v_max_f32 v{m}, v{m}, v{a1+3}", {V(m), V(a1 + 3)}, {V(m)}))
    ch += stat_exchange([V_MC + t for t in range(5)], "v_max_f32", STB)
    for tq in range(5):
        ch.append(valu(f"v_mul_f32 v{V_MC+tq}, s{S_C}, v{V_MC+tq}", {S(S_C), V(V_MC + tq)}, {V(V_MC + tq)}))
        ch.append(valu(f"v_mov_b32 v{V_L+tq}, 0", (), {V(V_L + tq)}))
    for tq in range(5):
        for kt in range(2): ch += p_unit(SA, tq, kt, PB0)
    schedule(em, back, [ch], cap=3)
    VSL0 = 14
    vtr = {}
    ops, vtr[VSL0] = tr_ops(VSL0, 4, VF)
    for op in ops: em.emit(op)
    em.wait(lg=8); em.lg_done = max(em.lg_done, em.lg_issued - 8)
    em.s("s_barrier")

    for it in range(8):
        em.comment(f"interval {it}")
        do_s = it + 2 <= 7; do_p = it + 1 <= 7
        pbuf = PB0 + PBSZ * (it & 1)
        sback = s_backbone(it + 2, SA if (it & 1) == 0 else SB_, 'a', KF) if do_s else []
        back = []; chains = []
        ptok = {}
        sidx = {}
        pvidx = {}
        def pv_group(ks, hf):
            s = VSL0 + 4 * it + ks
            g = []
            for td in (2 * hf, 2 * hf + 1):
                for tq in range(5):
                    nd = []
                    if tq == 0: nd += vtr[s][td]
                    if td == 0: nd.append(ptok[(ks, tq)])
                    g.append(mfma('v', OA + 4 * (td * 5 + tq), 'a', VF + 16 * (ks & 1) + 4 * td, 'v', PF + 20 * (ks & 1) + 4 * tq,
                                  czero=(it == 0 and ks == 0), needs=nd))
            return g
        pread = {}
        for ks in range(4):
            pread[ks] = []
            for tq in range(5):
                tk = Tok(); ptok[(ks, tq)] = tk
                r = PF + 20 * (ks & 1) + 4 * tq
                pread[ks].append(Op(f"ds_read_b128 v[{r}:{r+3}], v{V_PR+ks} offset:{pbuf+4096*tq}", 'lds', {V(V_PR + ks)}, regs('v', r, 4), tok=tk))
        trr = {}
        for ks in range(1, 5):
            s = VSL0 + 4 * it + ks
            if ks == 4 and it == 7: continue
            trr[ks], vtr[s] = tr_ops(s, 4, VF + 16 * (ks & 1))
        for k in range(8):
            if do_s:
                sidx[k] = len(back); back += sback[10 * k:10 * k + 10]
            ks, hf = k >> 1, k & 1
            pvidx[(ks, hf)] = len(back); back += pv_group(ks, hf)
        n = len(back)
        for ks in range(4):
            ch = pread[ks]
            if ks >= 2: ch[0].after = pvidx[(ks - 2, 1)] + 9
            elif ks == 1: ch[0].after = 0
            ch[-1].before = max(pvidx[(ks, 0)] - 4, 0) if not (ks == 0 and not do_s) else 0
            chains.append(ch)
        for ks in range(1, 5):
            if ks not in trr: continue
            ch = trr[ks]
            if ks >= 2: ch[0].after = pvidx[(ks - 2, 1)] + 9
            else: ch[0].after = 0
            if ks < 4: ch[-1].before = pvidx[(ks, 0)] - 4
            chains.append(ch)
        for ks in range(4):
            s = VSL0 + 4 * it + ks
            ch = dma_ops(s + RING_R, needs=[t for tt in vtr[s] for t in tt], after=pvidx[(ks, 1)] + 5)
            if ch: chains.append(ch)
        if do_s and it + 3 <= 7:
            ch = kbase(it + 3); ch[0].after = sidx[0] + 4
            for kk in range(8):
                for kt in range(2):
                    op = kload(it + 3, kt, kk, 'a', KF); op.after = sidx[kk] + kt * 5 + 4; ch.append(op)
            chains.append(ch)
        if do_p:
            ch = []
            units = [(tq, kt) for tq in range(5) for kt in range(2)]
            for u, (tq, kt) in enumerate(units):
                ops = p_unit(SB_ if (it & 1) == 0 else SA, tq, kt, PB0 + PBSZ * ((it + 1) & 1))
                ops[0].after = (n * u) // 11
                ch += ops
            chains.append(ch)
        if it == 7:
            ch = stat_exchange([V_L + t for t in range(5)], "v_add_f32", STB + 1280)
            for tq in range(5):
                ch.append(valu(f"v_rcp_f32 v{V_L+tq}, v{V_L+tq}", {V(V_L + tq)}, {V(V_L + tq)}, kind='trans'))
            chains.append(ch)
        schedule(em, back, chains, cap=2)
        if it < 7:
            em.wait_all(vm=False)
            em.s("s_barrier")
    em.wait_all(vm=False)
    em.s("s_barrier")
    otok = staging(OA, scale=V_L)

    ACC = SA
    back = []; chains = []
    wtr = {}
    def wo_reads(kk, after=None, before=None):
        dst = KF + 28 * (kk & 1)
        o1, t1 = tr_ops(46 + 2 * kk, 4, dst)
        o2, t2 = tr_ops(46 + 2 * kk + 1, 3, dst + 16)
        ops = o1 + o2
        if after is not None: ops[0].after = after
        if before is not None: ops[-1].before = before
        wtr[kk] = t1 + t2
        return ops
    for op in wo_reads(0): em.emit(op)
    for kk in range(8):
        dst = KF + 28 * (kk & 1)
        for tn in range(7):
            for tq in range(5):
                nd = list(wtr[kk][tn]) if tq == 0 else []
                if tn == 0: nd.append(otok[(kk, tq)])
                back.append(mfma('v', ACC + 4 * (tn * 5 + tq), 'a', dst + 4 * tn, 'a', QF + 4 * (kk * 5 + tq), czero=(kk == 0), needs=nd))
        ch = dma_ops(46 + 2 * kk + RING_R, needs=[t for tt in wtr[kk][:4] for t in tt], after=35 * kk + 25)
        ch += dma_ops(46 + 2 * kk + 1 + RING_R, needs=[t for tt in wtr[kk][4:] for t in tt], after=35 * kk + 32)
        if ch: chains.append(ch)
        if kk + 1 < 8:
            chains.append(wo_reads(kk + 1, after=35 * kk, before=35 * kk + 28))
    schedule(em, back, chains)
    em.v(f"v_add_u32 v6, s{S_ROW0}, v3", {S(S_ROW0), V(3)}, {V(6)})
    em.v("v_mul_u32_u24 v6, 896, v6", {V(6)}, {V(6)})
    em.v("v_lshl_add_u32 v6, v4, 3, v6", {V(4), V(6)}, {V(6)})
    em.s("s_mul_i32 s74, s28, 224", {S(S_W)}, {S(74)})
    em.v("v_add_u32 v6, s74, v6", {S(74), V(6)}, {V(6)})
    n = 0
    for tq in range(5):
        if tq == 4: em.s(f"s_mov_b64 exec, s[{S_EXEC}:{S_EXEC+1}]")
        for tn in range(7):
            a = ACC + 4 * (tn * 5 + tq)
            t = 216 + 2 * (n % 8); n += 1
            em.v(f"v_cvt_pk_bf16_f32 v{t}, v{a}, v{a+1}", {V(a), V(a + 1)}, {V(t)})
            em.v(f"v_cvt_pk_bf16_f32 v{t+1}, v{a+2}, v{a+3}", {V(a + 2), V(a + 3)}, {V(t + 1)})
            so = "0" if tq == 0 else f"s{S_TQ+tq}"
            em.emit(Op(f"buffer_store_dwordx2 v[{t}:{t+1}], v6, s[{S_PT}:{S_PT+3}], {so} offen offset:{32*tn}", 'vmem', {V(t), V(t + 1), V(6)}, ()))
    em.label("L_main_done")
    em.s("s_endpgm")

def reduce_kernel():
    kernel_begin("gqa_reduce_kernel")
    em.s("s_cmp_ge_u32 s2, 252", {S(2)}, ())
    em.s("s_cbranch_scc1 L_red_done")
    em.s("s_load_dwordx2 s[4:5], s[0:1], 56")
    em.s("s_load_dwordx2 s[6:7], s[0:1], 40")
    em.s("s_lshl_b32 s3, s2, 8")
    em.v("v_add_u32 v1, s3, v0", {V(0)}, {V(1)})
    em.v("v_lshlrev_b32 v1, 4, v1", {V(1)}, {V(1)})
    em.s("s_waitcnt lgkmcnt(0)")
    em.s("s_mov_b32 s8, s4"); em.s("s_mov_b32 s9, s5"); em.s(f"s_mov_b32 s10, {16*PART_H}"); em.s("s_mov_b32 s11, 0x00020000")
    em.s("s_mov_b32 s12, s6"); em.s("s_mov_b32 s13, s7"); em.s(f"s_mov_b32 s14, {PART_H}"); em.s("s_mov_b32 s15, 0x00020000")
    toks = []
    for h in range(16):
        if h: em.s(f"s_mov_b32 s{16+h}, {h*PART_H}", (), {S(16 + h)})
    for h in range(16):
        tk = Tok(); toks.append(tk)
        so = "0" if h == 0 else f"s{16+h}"
        em.emit(Op(f"buffer_load_dwordx4 v[{16+4*h}:{19+4*h}], v1, s[8:11], {so} offen", 'vmem', {V(1)}, regs('v', 16 + 4 * h, 4), tok=tk))
    for h in range(16):
        for r in range(4):
            src = 16 + 4 * h + r
            nd = [toks[h]] if r == 0 else []
            if h == 0:
                em.emit(Op(f"v_lshlrev_b32 v{4+2*r}, 16, v{src}", 'valu', {V(src)}, {V(4 + 2 * r)}, needs=nd))
                em.v(f"v_and_b32 v{5+2*r}, 0xffff0000, v{src}", {V(src)}, {V(5 + 2 * r)})
            else:
                em.emit(Op(f"v_lshlrev_b32 v2, 16, v{src}", 'valu', {V(src)}, {V(2)}, needs=nd))
                em.v(f"v_and_b32 v3, 0xffff0000, v{src}", {V(src)}, {V(3)})
                em.v(f"v_add_f32 v{4+2*r}, v{4+2*r}, v2", {V(2), V(4 + 2 * r)}, {V(4 + 2 * r)})
                em.v(f"v_add_f32 v{5+2*r}, v{5+2*r}, v3", {V(3), V(5 + 2 * r)}, {V(5 + 2 * r)})
    for r in range(4):
        em.v(f"v_cvt_pk_bf16_f32 v{12+r}, v{4+2*r}, v{5+2*r}", {V(4 + 2 * r), V(5 + 2 * r)}, {V(12 + r)})
    em.emit(Op("buffer_store_dwordx4 v[12:15], v1, s[12:15], 0 offen", 'vmem', regs('v', 12, 4) | {V(1)}, ()))
    em.label("L_red_done")
    em.s("s_endpgm")

lines_top = [
 "; GQA block (Q-proj + attention + out-proj), generated by gen/gen.py",
 f"; @launch kernel=gqa_main_kernel grid=(256,1,1) block=(256,1,1) lds={LDS_SIZE}",
 "; @launch kernel=gqa_reduce_kernel grid=(252,1,1) block=(256,1,1) lds=0",
]
header()
main_kernel()
reduce_kernel()
kernel_desc("gqa_main_kernel", 512, 96, 256)
kernel_desc("gqa_reduce_kernel", 80, 40, 80)
open(OUT, "w").write("\n".join(lines_top) + "\n" + "\n".join(em.lines) + "\n")
print("instructions:", em.ninstr, em.stats)
```
